```python
import torch

def _softmax(x, axis=-1):
    return torch.softmax(x, dim=axis)
def _gelu(x):
    return torch.nn.functional.gelu(x, approximate="tanh")
def _silu(x):
    return torch.nn.functional.silu(x)
def _sigmoid(x):
    return torch.sigmoid(x)
def _layernorm(x, axis=-1, eps=1e-5):
    m = x.mean(dim=axis, keepdim=True)
    v = x.var(dim=axis, keepdim=True, unbiased=False)
    return (x - m) / torch.sqrt(v + eps)
def _scatter_add(tgt, idx, src, axis=0):
    return tgt.clone().index_add_(axis, idx, src)
def _segment_sum(src, seg, n):
    out = torch.zeros((n,) + src.shape[1:], dtype=src.dtype)
    return out.index_add_(0, seg, src)
def _pad(x, pw):
    flat = tuple(v for pair in reversed(pw) for v in pair)
    return torch.nn.functional.pad(x, flat)

kernel_name = 'gated_mix__linear_kernel_hedgehog__grouped_kv_mqa__prompt'

def setup_inputs():

    _w = (lambda a: (lambda t: t.to(torch.bfloat16) if t.is_floating_point() else t)(torch.as_tensor(a)))
    def _A_setup():
        B, S, D, H = 1, 2048, 512, 32
        Dh = D // H
        return {
            "x": _w((lambda *s: torch.randn(*s, dtype=torch.bfloat16) * 0.05)(B, S, D)),
            "wqkv": _w((lambda *s: torch.randn(*s, dtype=torch.bfloat16) * 1.6)(D, 3 * D)),
            "w_phi": _w((lambda *s: torch.randn(*s, dtype=torch.bfloat16) * 1.6)(H, Dh, Dh) * (Dh ** -0.5)),
            "wo": _w((lambda *s: torch.randn(*s, dtype=torch.bfloat16) * 0.4)(D, D)),
        }
    _A_in = _A_setup()

    def _B_setup():
        B, S, D, H = 1, 2048, 512, 32
        Dh = D // H
        return {
            "x": _w((lambda *s: torch.randn(*s, dtype=torch.bfloat16) * 0.05)(B, S, D)),
            "wq": _w((lambda *s: torch.randn(*s, dtype=torch.bfloat16) * 3.2)(D, H * Dh)),
            "wk": _w((lambda *s: torch.randn(*s, dtype=torch.bfloat16) * 3.2)(D, Dh)),
            "wv": _w((lambda *s: torch.randn(*s, dtype=torch.bfloat16) * 0.1)(D, Dh)),
            "wo": _w((lambda *s: torch.randn(*s, dtype=torch.bfloat16) * 0.1)(H * Dh, D)),
        }
    _B_in = _B_setup()

    return {
        "A_x": _A_in["x"],
        "A_wqkv": _A_in["wqkv"],
        "A_w_phi": _A_in["w_phi"],
        "A_wo": _A_in["wo"],
        "B_x": _B_in["x"],
        "B_wq": _B_in["wq"],
        "B_wk": _B_in["wk"],
        "B_wv": _B_in["wv"],
        "B_wo": _B_in["wo"],
        "gate_w": _w((lambda *s: torch.randn(*s, dtype=torch.bfloat16) * 0.05)(512) * 16.0),
    }

def reference(A_x, A_wqkv, A_w_phi, A_wo, B_x, B_wq, B_wk, B_wv, B_wo, gate_w):
    def _A_ref(x, wqkv, w_phi, wo):
        B, S, D = x.shape
        H = 32; Dh = D // H
        qkv = (lambda x, *d: x.permute(*d))((x @ wqkv).reshape(B, S, 3, H, Dh), 2, 0, 3, 1, 4)
        q, k, v = qkv[0], qkv[1], qkv[2]
        pq = torch.einsum("bhsd,hdf->bhsf", q, w_phi)
        pk = torch.einsum("bhsd,hdf->bhsf", k, w_phi)
        phi_q = torch.concatenate([_softmax(pq, axis=-1), _softmax(-pq, axis=-1)], axis=-1)
        phi_k = torch.concatenate([_softmax(pk, axis=-1), _softmax(-pk, axis=-1)], axis=-1)
        kv = torch.einsum("bhsf,bhsd->bhfd", phi_k, v)
        z  = torch.einsum("bhsf->bhf", phi_k)
        num = torch.einsum("bhqf,bhfd->bhqd", phi_q, kv)
        den = torch.einsum("bhqf,bhf->bhq", phi_q, z)[..., None] + 1e-6
        o = num / den
        return (lambda x, *d: x.permute(*d))(o, 0, 2, 1, 3).reshape(B, S, D) @ wo

    def _B_ref(x, wq, wk, wv, wo):
        B, S, D = x.shape
        H = 32
        Dh = D // H
        q = (lambda x, *d: x.permute(*d))((x @ wq).reshape(B, S, H, Dh), 0, 2, 1, 3)
        k = x @ wk
        v = x @ wv
        scores = torch.einsum("bhqd,bkd->bhqk", q, k) * (Dh ** -0.5)
        p = _softmax(scores, axis=-1)
        o = torch.einsum("bhqk,bkd->bhqd", p, v)
        return (lambda x, *d: x.permute(*d))(o, 0, 2, 1, 3).reshape(B, S, H * Dh) @ wo

    x = A_x
    g = _sigmoid((x * gate_w).sum(-1, keepdims=True))
    a = _A_ref(x, A_wqkv, A_w_phi, A_wo)
    b = _B_ref(x, B_wq, B_wk, B_wv, B_wo)
    return g * a + (1 - g) * b
```

```python
import sys
def gen(name, body, iters, nvgpr=128, threads=256, grid=256, lds=0, pre=''):
    s = f"""; @launch grid=({grid},1,1) block=({threads},1,1) lds={lds}
.amdgcn_target "amdgcn-amd-amdhsa--gfx950"
.text
.globl mb_kernel
.p2align 8
.type mb_kernel,@function
mb_kernel:
    s_load_dwordx2 s[4:5], s[0:1], 96
    s_waitcnt lgkmcnt(0)
    s_mov_b32 s8, s4
    s_mov_b32 s9, s5
    s_mov_b32 s10, 0x1000000
    s_mov_b32 s11, 0x00020000
"""
    for i in range(1, nvgpr):
        s += f"    v_mov_b32 v{i}, 0\n"
    s += f"""    v_lshlrev_b32 v1, 4, v0
    v_and_b32 v1, 0x3ff, v1
    v_readfirstlane_b32 s20, v0
    s_nop 3
    s_lshr_b32 s20, s20, 6
{pre}
    s_mov_b32 s12, {iters}
    s_barrier
    s_memtime s[14:15]
    s_waitcnt lgkmcnt(0)
.p2align 6
L_loop:
{body}
    s_sub_u32 s12, s12, 1
    s_cmp_lg_u32 s12, 0
    s_cbranch_scc1 L_loop
L_end:
    s_memtime s[16:17]
    s_waitcnt lgkmcnt(0)
    v_mov_b32 v2, s14
    v_mov_b32 v3, s16
    s_lshl_b32 s3, s2, 13
    v_lshlrev_b32 v4, 3, v0
    v_add_u32 v4, s3, v4
    buffer_store_dwordx2 v[2:3], v4, s[8:11], 0 offen
    s_waitcnt vmcnt(0)
    s_endpgm
.section .rodata,"a"
.p2align 6
.amdhsa_kernel mb_kernel
  .amdhsa_next_free_vgpr {nvgpr}
  .amdhsa_next_free_sgpr 32
  .amdhsa_accum_offset {nvgpr}
  .amdhsa_group_segment_fixed_size 0
  .amdhsa_kernarg_size 104
  .amdhsa_user_sgpr_count 2
  .amdhsa_user_sgpr_kernarg_segment_ptr 1
  .amdhsa_system_sgpr_workgroup_id_x 1
.end_amdhsa_kernel
"""
    open(name, 'w').write(s)

R = 8
def rep(fmt):
    return ''.join(fmt(i) for i in range(32)) * R
bodies = {}
N = {}
def add(k, fmt, n=32*R):
    bodies[k] = rep(fmt); N[k] = n
add('exp', lambda i: f"    v_exp_f32 v{16+i}, v{64+i}\n")
add('exp_f16', lambda i: f"    v_exp_f16 v{16+i}, v{64+i}\n")
add('add', lambda i: f"    v_add_f32 v{16+i}, v{64+i}, v{64+i}\n")
add('add2', lambda i: f"    v_add_f32 v{16+i}, v{64+i}, v{65+i}\n")
add('add_e64', lambda i: f"    v_add_f32_e64 v{16+i}, v{64+i}, v{65+i}\n")
add('fma', lambda i: f"    v_fma_f32 v{16+i}, v{64+i}, v{65+i}, v{66+i}\n")
add('fmac', lambda i: f"    v_fmac_f32 v{16+i}, v{64+i}, v{65+i}\n")
add('max', lambda i: f"    v_max_f32 v{16+i}, v{64+i}, v{65+i}\n")
add('and', lambda i: f"    v_and_b32 v{16+i}, v{64+i}, v{65+i}\n")
add('lshr', lambda i: f"    v_lshrrev_b32 v{16+i}, 16, v{65+i}\n")
add('mov', lambda i: f"    v_mov_b32 v{16+i}, v{65+i}\n")
add('cvtpk', lambda i: f"    v_cvt_pk_bf16_f32 v{16+i}, v{64+i}, v{65+i}\n")
add('cvtpkrtz', lambda i: f"    v_cvt_pkrtz_f16_f32 v{16+i}, v{64+i}, v{65+i}\n")
add('perm', lambda i: f"    v_perm_b32 v{16+i}, v{64+i}, v{65+i}, v8\n")
add('andor', lambda i: f"    v_and_or_b32 v{16+i}, v{64+i}, v{65+i}, v8\n")
add('alignbit', lambda i: f"    v_alignbit_b32 v{16+i}, v{64+i}, v{65+i}, 16\n")
add('bfi', lambda i: f"    v_bfi_b32 v{16+i}, v8, v{64+i}, v{65+i}\n")
add('sdwamov', lambda i: f"    v_mov_b32_sdwa v{16+i}, v{64+i} dst_sel:WORD_0 dst_unused:UNUSED_PRESERVE src0_sel:WORD_1\n")
add('sdwaor', lambda i: f"    v_or_b32_sdwa v{16+i}, v{64+i}, v{65+i} dst_sel:DWORD dst_unused:UNUSED_PAD src0_sel:WORD_1 src1_sel:DWORD\n")
add('pkadd', lambda i: f"    v_pk_add_f32 v[{16+2*(i%16)}:{17+2*(i%16)}], v[{64+2*(i%16)}:{65+2*(i%16)}], v[{64+2*(i%16)}:{65+2*(i%16)}]\n")
add('pkmul', lambda i: f"    v_pk_mul_f32 v[{16+2*(i%16)}:{17+2*(i%16)}], v[{64+2*(i%16)}:{65+2*(i%16)}], v[{66+2*(i%16)}:{67+2*(i%16)}]\n")
add('max3', lambda i: f"    v_max3_f32 v{16+i}, v{64+i}, v{65+i}, v{66+i}\n")
add('exp_add', lambda i: (f"    v_exp_f32 v{16+i}, v{64+i}\n" if i%2==0 else f"    v_add_f32 v{16+i}, v{64+i}, v{65+i}\n"))
add('exp_add_blk', lambda i: (f"    v_exp_f32 v{16+i}, v{64+i}\n" if i<16 else f"    v_add_f32 v{16+i}, v{64+i}, v{65+i}\n"))
add('exp_cvt', lambda i: (f"    v_exp_f32 v{16+i}, v{64+i}\n" if i%2==0 else f"    v_cvt_pk_bf16_f32 v{16+i}, v{64+i}, v{65+i}\n"))
add('mfma32', lambda i: f"    v_mfma_f32_32x32x16_bf16 v[{16+16*(i%3)}:{31+16*(i%3)}], v[64:67], v[68:71], v[{16+16*(i%3)}:{31+16*(i%3)}]\n")
add('mfma16', lambda i: f"    v_mfma_f32_16x16x32_bf16 v[{16+4*(i%8)}:{19+4*(i%8)}], v[64:67], v[68:71], v[{16+4*(i%8)}:{19+4*(i%8)}]\n")
add('exp7_mfma32', lambda i: (f"    v_mfma_f32_32x32x16_bf16 v[96:111], v[64:67], v[68:71], v[96:111]\n" if i%8==0 else f"    v_exp_f32 v{16+i}, v{64+i}\n"))
add('exp7_mfma16', lambda i: (f"    v_mfma_f32_16x16x32_bf16 v[96:99], v[64:67], v[68:71], v[96:99]\n" if i%8==0 else f"    v_exp_f32 v{16+i}, v{64+i}\n"))
add('exp7_nop', lambda i: (f"    s_nop 0\n" if i%8==0 else f"    v_exp_f32 v{16+i}, v{64+i}\n"))
add('exp7_ds', lambda i: (f"    ds_read_b128 v[96:99], v1\n" if i%8==0 else f"    v_exp_f32 v{16+i}, v{64+i}\n"))
if __name__ == '__main__':
    for k, b in bodies.items():
        for th in (256, 512, 1024):
            gen(f'mb_{k}_{th}.s', b, 200, nvgpr=128, threads=th, lds=4096)
```

```python
from mb2_gen import gen
R = 8
def rep(fmt):
    return ''.join(fmt(i) for i in range(32)) * R
bodies = {}
N = {}
def add(k, fmt, n=32*R):
    bodies[k] = rep(fmt); N[k] = n
add('smf32', lambda i: f"    v_smfmac_f32_32x32x32_bf16 v[{16+16*(i%3)}:{31+16*(i%3)}], v[64:67], v[68:75], v8\n")
add('smf32same', lambda i: f"    v_smfmac_f32_32x32x32_bf16 v[16:31], v[64:67], v[68:75], v8\n")
add('smf16', lambda i: f"    v_smfmac_f32_16x16x64_bf16 v[{16+4*(i%8)}:{19+4*(i%8)}], v[64:67], v[68:75], v8\n")
add('exp7_smf32', lambda i: (f"    v_smfmac_f32_32x32x32_bf16 v[96:111], v[112:115], v[116:123], v8\n" if i%8==0 else f"    v_exp_f32 v{16+i}, v{64+i}\n"))
add('exp3_smf32', lambda i: (f"    v_smfmac_f32_32x32x32_bf16 v[96:111], v[112:115], v[116:123], v8\n" if i%4==0 else f"    v_exp_f32 v{16+i}, v{64+i}\n"))
add('exp3_mfma32', lambda i: (f"    v_mfma_f32_32x32x16_bf16 v[96:111], v[112:115], v[116:119], v[96:111]\n" if i%4==0 else f"    v_exp_f32 v{16+i}, v{64+i}\n"))
def attn(ds):
    s = ''
    for t in range(8):
        half = t & 1
        Sc = 16 + 16*half; Sn = 16 + 16*(1-half)
        Kn = 88 if half == 0 else 104
        Kl = 104 if half == 0 else 88
        Vc = 96 if half == 0 else 108
        Vl = 108 if half == 0 else 96
        for i in range(8):
            s += f"    v_exp_f32 v{Sc+i}, v{Sc+i}\n"
            if i == 1:
                if ds: s += "    s_waitcnt lgkmcnt(2)\n"
                s += f"    v_mfma_f32_32x32x16_bf16 v[{Sn}:{Sn+15}], v[{Kn}:{Kn+3}], v[92:95], v[48:63]\n"
                if ds: s += f"    ds_read_b128 v[{Kl}:{Kl+3}], v1\n"
        for i in range(8):
            s += f"    v_exp_f32 v{Sc+8+i}, v{Sc+8+i}\n"
            if i == 1:
                if ds: s += "    s_waitcnt lgkmcnt(2)\n"
                s += f"    v_smfmac_f32_32x32x32_bf16 v[64:79], v[{Vc}:{Vc+3}], v[{Sc}:{Sc+7}], v8\n"
                if ds: s += f"    ds_read_b128 v[{Vl}:{Vl+3}], v1 offset:1024\n"
        s += "    s_nop 1\n"
        if ds: s += "    s_waitcnt lgkmcnt(2)\n"
        s += f"    v_smfmac_f32_32x32x32_bf16 v[64:79], v[{Vc+4}:{Vc+7}], v[{Sc+8}:{Sc+15}], v8\n"
        if ds: s += f"    ds_read_b128 v[{Vl+4}:{Vl+7}], v1 offset:2048\n"
    return s
bodies['attn_nods'] = attn(False); N['attn_nods'] = 8
bodies['attn_ds'] = attn(True); N['attn_ds'] = 8
if __name__ == '__main__':
    for k, b in bodies.items():
        for th in (256, 512, 1024):
            gen(f'mb_{k}_{th}.s', b, 200, nvgpr=128, threads=th, lds=4096)
```

```python
from mb2_gen import gen
THREADS = (256, 512)
ITERS = 100
LDS = 140000
bodies = {}; N = {}
def v(n, c=1): return f'v{n}' if c == 1 else f'v[{n}:{n+c-1}]'
def attn(pos_smf2=1, pos_rd=2, pos_qk=4, pos_smf1=10, toggle=True, batch2=False, wait_early=False, split_rd=False):
    s = ''
    Q_ = [16, 20]; N_ = [32, 48]; O_ = [64, 80]; S_ = [96, 112]
    KB = [128, 132, 160, 164]; VB = [136, 144, 168, 176]
    nb = 4 if batch2 else 2
    for u in range(8):
        t, p = u >> 1, u & 1
        X = S_[p]; Y = S_[1-p]
        for e in range(16):
            s += f'    v_exp_f32 {v(X+e)}, {v(X+e)}\n'
            if e == pos_smf2:
                tp = ((u-1) >> 1) % nb
                s += f'    v_smfmac_f32_32x32x32_bf16 {v(O_[1-p],16)}, {v(VB[tp]+4,4)}, {v(Y+8,8)}, v24\n'
            if not batch2:
                if e == pos_rd and p == 0:
                    s += f'    ds_read_b128 {v(KB[(t+1)&1],4)}, v27 offset:{(t+1)*1024}\n'
                if e == (pos_rd if not split_rd else pos_rd+5) and p == 0:
                    if toggle: s += '    s_mov_b64 exec, s[22:23]\n'
                    s += f'    ds_read_b128 {v(VB[(t+1)&1],4)}, v28 offset:{(t+1)*1024}\n'
                    s += f'    ds_read_b128 {v(VB[(t+1)&1]+4,4)}, v28 offset:{(t+1)*1024+512}\n'
                    if toggle: s += '    s_mov_b64 exec, -1\n'
            else:
                if e == pos_rd and p == 0 and t % 2 == 0:
                    for d in (2, 3):
                        s += f'    ds_read_b128 {v(KB[(t+d)%4],4)}, v27 offset:{(t+d)*1024}\n'
                    if toggle: s += '    s_mov_b64 exec, s[22:23]\n'
                    for d in (2, 3):
                        s += f'    ds_read_b128 {v(VB[(t+d)%4],4)}, v28 offset:{(t+d)*1024}\n'
                        s += f'    ds_read_b128 {v(VB[(t+d)%4]+4,4)}, v28 offset:{(t+d)*1024+512}\n'
                    if toggle: s += '    s_mov_b64 exec, -1\n'
            if e == pos_qk:
                tn, pn = (u+1) >> 1, (u+1) & 1
                if pn == 0 and (not batch2 or tn % 2 == 0): s += '    s_waitcnt lgkmcnt(0)\n'
                s += f'    v_mfma_f32_32x32x16_bf16 {v(Y,16)}, {v(KB[tn%nb],4)}, {v(Q_[pn],4)}, {v(N_[pn],16)}\n'
            if e == pos_smf1:
                s += f'    v_smfmac_f32_32x32x32_bf16 {v(O_[p],16)}, {v(VB[t%nb],4)}, {v(X,8)}, v24\n'
    return s
PRE = {}
base_pre = "    s_mov_b32 s22, 0xffff\n    s_mov_b32 s23, 0xffff\n    v_mov_b32 v27, v1\n    v_add_u32 v28, 0x10000, v1\n"
def add(k, body, pre=''):
    bodies[k] = body; N[k] = 8; PRE[k] = base_pre + pre
prio_young = "    s_cmp_lt_u32 s20, 4\n    s_cbranch_scc1 L_np\n    s_setprio 1\nL_np:\n"
add('v0', attn())
add('v0_prio', attn(), prio_young)
add('notoggle', attn(toggle=False))
add('batch2', attn(batch2=True))
add('batch2_nt', attn(batch2=True, toggle=False))
add('p_1_5_10', attn(pos_qk=5, pos_rd=7))
add('p_2_6_11', attn(pos_smf2=2, pos_qk=6, pos_smf1=11, pos_rd=8))
add('p_1_6_11', attn(pos_smf2=1, pos_qk=6, pos_smf1=11, pos_rd=3))
add('p_3_8_13', attn(pos_smf2=3, pos_qk=8, pos_smf1=13, pos_rd=5))
add('p_1_2_9', attn(pos_smf2=1, pos_qk=2, pos_smf1=9, pos_rd=4))
add('split', attn(split_rd=True))
if __name__ == '__main__':
    for k, b in bodies.items():
        for th in THREADS:
            gen(f'mb_{k}_{th}.s', b, ITERS, nvgpr=192, threads=th, lds=LDS, pre=PRE[k])
```

```python
from mb2_gen import gen
THREADS = (256, 512)
ITERS = 100
LDS = 140000
bodies = {}; N = {}
def v(n, c=1): return f'v{n}' if c == 1 else f'v[{n}:{n+c-1}]'
def attn(pos_smf2=1, pos_rd=2, pos_qk=4, pos_smf1=10, toggle=True, batch2=False, wait_early=False, split_rd=False):
    s = ''
    Q_ = [16, 20]; N_ = [32, 48]; O_ = [64, 80]; S_ = [96, 112]
    KB = [128, 132, 160, 164]; VB = [136, 144, 168, 176]
    nb = 4 if batch2 else 2
    for u in range(8):
        t, p = u >> 1, u & 1
        X = S_[p]; Y = S_[1-p]
        for e in range(16):
            s += f'    v_exp_f32 {v(X+e)}, {v(X+e)}\n'
            if e == pos_smf2:
                tp = ((u-1) >> 1) % nb
                s += f'    v_smfmac_f32_32x32x32_bf16 {v(O_[1-p],16)}, {v(VB[tp]+4,4)}, {v(Y+8,8)}, v24\n'
            if not batch2:
                if e == pos_rd and p == 0:
                    s += f'    ds_read_b128 {v(KB[(t+1)&1],4)}, v27 offset:{(t+1)*1024}\n'
                if e == (pos_rd if not split_rd else pos_rd+5) and p == 0:
                    if toggle: s += '    s_mov_b64 exec, s[22:23]\n'
                    s += f'    ds_read_b128 {v(VB[(t+1)&1],4)}, v28 offset:{(t+1)*1024}\n'
                    s += f'    ds_read_b128 {v(VB[(t+1)&1]+4,4)}, v28 offset:{(t+1)*1024+512}\n'
                    if toggle: s += '    s_mov_b64 exec, -1\n'
            else:
                if e == pos_rd and p == 0 and t % 2 == 0:
                    for d in (2, 3):
                        s += f'    ds_read_b128 {v(KB[(t+d)%4],4)}, v27 offset:{(t+d)*1024}\n'
                    if toggle: s += '    s_mov_b64 exec, s[22:23]\n'
                    for d in (2, 3):
                        s += f'    ds_read_b128 {v(VB[(t+d)%4],4)}, v28 offset:{(t+d)*1024}\n'
                        s += f'    ds_read_b128 {v(VB[(t+d)%4]+4,4)}, v28 offset:{(t+d)*1024+512}\n'
                    if toggle: s += '    s_mov_b64 exec, -1\n'
            if e == pos_qk:
                tn, pn = (u+1) >> 1, (u+1) & 1
                if pn == 0 and (not batch2 or tn % 2 == 0): s += '    s_waitcnt lgkmcnt(0)\n'
                s += f'    v_mfma_f32_32x32x16_bf16 {v(Y,16)}, {v(KB[tn%nb],4)}, {v(Q_[pn],4)}, {v(N_[pn],16)}\n'
            if e == pos_smf1:
                s += f'    v_smfmac_f32_32x32x32_bf16 {v(O_[p],16)}, {v(VB[t%nb],4)}, {v(X,8)}, v24\n'
    return s
PRE = {}
base_pre = "    s_mov_b32 s22, 0xffff\n    s_mov_b32 s23, 0xffff\n    v_mov_b32 v27, v1\n    v_add_u32 v28, 0x10000, v1\n"
def add(k, body, pre=''):
    bodies[k] = body; N[k] = 8; PRE[k] = base_pre + pre
prio_young = "    s_cmp_lt_u32 s20, 4\n    s_cbranch_scc1 L_np\n    s_setprio 1\nL_np:\n"
bar = "    s_barrier\n"
def grouped(pos=7, order='smf2,qk,smf1'):
    s = ''
    Q_ = [16, 20]; N_ = [32, 48]; O_ = [64, 80]; S3 = [96, 112, 160]
    KB = [128, 132]; VB = [136, 144]
    for u in range(6):
        t, p = u >> 1, u & 1
        X = S3[u % 3]; Pv = S3[(u-1) % 3]; Nx = S3[(u+1) % 3]
        for e in range(16):
            s += f'    v_exp_f32 {v(X+e)}, {v(X+e)}\n'
            if e == pos:
                tn, pn = (u+1) >> 1, (u+1) & 1
                tp = ((u-1) >> 1) & 1
                if pn == 0: s += '    s_waitcnt lgkmcnt(0)\n'
                s += f'    v_mfma_f32_32x32x16_bf16 {v(Nx,16)}, {v(KB[tn&1],4)}, {v(Q_[pn],4)}, {v(N_[pn],16)}\n'
                s += f'    v_smfmac_f32_32x32x32_bf16 {v(O_[1-p],16)}, {v(VB[tp],4)}, {v(Pv,8)}, v24\n'
                s += f'    v_smfmac_f32_32x32x32_bf16 {v(O_[1-p],16)}, {v(VB[tp]+4,4)}, {v(Pv+8,8)}, v24\n'
                if p == 0:
                    s += f'    ds_read_b128 {v(KB[(t+1)&1],4)}, v27 offset:{(t+1)*1024}\n    s_mov_b64 exec, s[22:23]\n'
                    s += f'    ds_read_b128 {v(VB[(t+1)&1],4)}, v28 offset:{(t+1)*1024}\n    ds_read_b128 {v(VB[(t+1)&1]+4,4)}, v28 offset:{(t+1)*1024+512}\n    s_mov_b64 exec, -1\n'
    return s
add('v0', attn())
add('v0_bar', attn() + bar)
add('nt', attn(toggle=False))
add('nt_bar', attn(toggle=False) + bar)
add('p_1_6_11', attn(pos_smf2=1, pos_qk=6, pos_smf1=11, pos_rd=3))
add('p_1_2_9', attn(pos_smf2=1, pos_qk=2, pos_smf1=9, pos_rd=4))
add('grp', grouped(1)); N['grp'] = 6
add('grp_bar', grouped(1) + bar); N['grp_bar'] = 6
if __name__ == '__main__':
    for k, b in bodies.items():
        for th in THREADS:
            gen(f'mb_{k}_{th}.s', b, ITERS, nvgpr=192, threads=th, lds=LDS, pre=PRE[k])
```
